```python
import torch

def _softmax(x, axis=-1):
    return torch.softmax(x, dim=axis)
def _gelu(x):
    return torch.nn.functional.gelu(x, approximate="tanh")
def _silu(x):
    return torch.nn.functional.silu(x)
def _sigmoid(x):
    return torch.sigmoid(x)
def _layernorm(x, axis=-1, eps=1e-5):
    m = x.mean(dim=axis, keepdim=True)
    v = x.var(dim=axis, keepdim=True, unbiased=False)
    return (x - m) / torch.sqrt(v + eps)
def _scatter_add(tgt, idx, src, axis=0):
    return tgt.clone().index_add_(axis, idx, src)
def _segment_sum(src, seg, n):
    out = torch.zeros((n,) + src.shape[1:], dtype=src.dtype)
    return out.index_add_(0, seg, src)
def _pad(x, pw):
    flat = tuple(v for pair in reversed(pw) for v in pair)
    return torch.nn.functional.pad(x, flat)

kernel_name = 'gated_mix__linear_kernel_hedgehog__softmax_full_mha__prompt'

def setup_inputs():

    _w = (lambda a: (lambda t: t.to(torch.bfloat16) if t.is_floating_point() else t)(torch.as_tensor(a)))
    def _A_setup():
        B, S, D, H = 1, 2048, 640, 32
        Dh = D // H
        return {
            "x": _w((lambda *s: torch.randn(*s, dtype=torch.bfloat16) * 0.05)(B, S, D)),
            "wqkv": _w((lambda *s: torch.randn(*s, dtype=torch.bfloat16) * 1.6)(D, 3 * D)),
            "w_phi": _w((lambda *s: torch.randn(*s, dtype=torch.bfloat16) * 1.6)(H, Dh, Dh) * (Dh ** -0.5)),
            "wo": _w((lambda *s: torch.randn(*s, dtype=torch.bfloat16) * 0.05)(D, D)),
        }
    _A_in = _A_setup()

    def _B_setup():
        B, S, D = 1, 2048, 640
        return {
            "x": _w((lambda *s: torch.randn(*s, dtype=torch.bfloat16) * 0.05)(B, S, D)),
            "wqkv": _w((lambda *s: torch.randn(*s, dtype=torch.bfloat16) * 0.8)(D, 3 * D)),
            "wo": _w((lambda *s: torch.randn(*s, dtype=torch.bfloat16) * 0.05)(D, D)),
        }
    _B_in = _B_setup()

    return {
        "A_x": _A_in["x"],
        "A_wqkv": _A_in["wqkv"],
        "A_w_phi": _A_in["w_phi"],
        "A_wo": _A_in["wo"],
        "B_x": _B_in["x"],
        "B_wqkv": _B_in["wqkv"],
        "B_wo": _B_in["wo"],
        "gate_w": _w((lambda *s: torch.randn(*s, dtype=torch.bfloat16) * 0.05)(640) * 16.0),
    }

def reference(A_x, A_wqkv, A_w_phi, A_wo, B_x, B_wqkv, B_wo, gate_w):
    def _A_ref(x, wqkv, w_phi, wo):
        B, S, D = x.shape
        H = 32; Dh = D // H
        qkv = (lambda x, *d: x.permute(*d))((x @ wqkv).reshape(B, S, 3, H, Dh), 2, 0, 3, 1, 4)
        q, k, v = qkv[0], qkv[1], qkv[2]
        pq = torch.einsum("bhsd,hdf->bhsf", q, w_phi)
        pk = torch.einsum("bhsd,hdf->bhsf", k, w_phi)
        phi_q = torch.concatenate([_softmax(pq, axis=-1), _softmax(-pq, axis=-1)], axis=-1)
        phi_k = torch.concatenate([_softmax(pk, axis=-1), _softmax(-pk, axis=-1)], axis=-1)
        kv = torch.einsum("bhsf,bhsd->bhfd", phi_k, v)
        z  = torch.einsum("bhsf->bhf", phi_k)
        num = torch.einsum("bhqf,bhfd->bhqd", phi_q, kv)
        den = torch.einsum("bhqf,bhf->bhq", phi_q, z)[..., None] + 1e-6
        o = num / den
        return (lambda x, *d: x.permute(*d))(o, 0, 2, 1, 3).reshape(B, S, D) @ wo

    def _B_ref(x, wqkv, wo):
        B, S, D = x.shape
        H = 32; Dh = D // H
        qkv = (lambda x, *d: x.permute(*d))((x @ wqkv).reshape(B, S, 3, H, Dh), 2, 0, 3, 1, 4)
        q, k, v = qkv[0], qkv[1], qkv[2]
        scale = Dh ** -0.5
        scores = torch.einsum("bhqd,bhkd->bhqk", q, k) * scale
        p = _softmax(scores, axis=-1)
        o = torch.einsum("bhqk,bhkd->bhqd", p, v)
        return (lambda x, *d: x.permute(*d))(o, 0, 2, 1, 3).reshape(B, S, D) @ wo

    x = A_x
    g = _sigmoid((x * gate_w).sum(-1, keepdims=True))
    a = _A_ref(x, A_wqkv, A_w_phi, A_wo)
    b = _B_ref(x, B_wqkv, B_wo)
    return g * a + (1 - g) * b
```

```python
class Asm:
    def __init__(self):
        self.lines = []
        self.vm = []
        self.uid = 0
    def __call__(self, s):
        for ln in s.strip("\n").split("\n"):
            self.lines.append("    " + ln.strip())
    def label(self, name):
        self.lines.append(name + ":")
    def raw(self, s):
        self.lines.append(s)
    def comment(self, s):
        self.lines.append("    ; " + s)
    def newlabel(self, base):
        self.uid += 1
        return f"L_{base}_{self.uid}"
    def vm_issue(self, tag):
        self.vm.append(tag)
    def vm_wait(self, tag):
        idx = max(i for i, t in enumerate(self.vm) if t == tag) if tag in self.vm else None
        if idx is None:
            return
        n = len(self.vm) - 1 - idx
        assert n <= 63
        self(f"s_waitcnt vmcnt({n})")
        self.vm = self.vm[idx + 1:]
    def vm_wait_all(self):
        self("s_waitcnt vmcnt(0)")
        self.vm = []
    def text(self):
        return "\n".join(self.lines) + "\n"

def vr(b, n=1):
    return f"v{b}" if n == 1 else f"v[{b}:{b+n-1}]"
def sr(b, n=1):
    return f"s{b}" if n == 1 else f"s[{b}:{b+n-1}]"

def srd(a, d, base, nbytes):
    a(f"s_mov_b32 s{d}, s{base}")
    a(f"s_mov_b32 s{d+1}, s{base+1}")
    a(f"s_mov_b32 s{d+2}, {nbytes}")
    a(f"s_mov_b32 s{d+3}, 0x00020000")

def srd_off(a, d, base, off, nbytes):
    a(f"s_add_u32 s{d}, s{base}, {off}")
    a(f"s_addc_u32 s{d+1}, s{base+1}, 0")
    a(f"s_mov_b32 s{d+2}, {nbytes}")
    a(f"s_mov_b32 s{d+3}, 0x00020000")

def kernel_header(name):
    return f""".globl {name}
.p2align 8
.type {name},@function
{name}:
"""
def kernel_desc(name, nvgpr, nsgpr=102):
    acc = (nvgpr + 3) // 4 * 4
    return f""".p2align 6
.amdhsa_kernel {name}
  .amdhsa_next_free_vgpr {nvgpr}
  .amdhsa_next_free_sgpr {nsgpr}
  .amdhsa_accum_offset {acc}
  .amdhsa_group_segment_fixed_size 0
  .amdhsa_kernarg_size 88
  .amdhsa_user_sgpr_count 2
  .amdhsa_user_sgpr_kernarg_segment_ptr 1
  .amdhsa_system_sgpr_workgroup_id_x 1
.end_amdhsa_kernel
"""
import struct
def f32bits(x):
    return "0x%08x" % struct.unpack("<I", struct.pack("<f", x))[0]
```

```python
from asmlib import *
from layout import *

def gen_k1(name="k1_kernel", D=8):
    a = Asm()
    a.raw(kernel_header(name))
    S_X, S_W, S_O = 8, 12, 16
    sXCD, sIDX, sRG, sCG, sRB, sCTL, sC128, sBR, sMT, sCM0, sWV, sT0, sTMP, sTMP2, sSCALE, sM0B = range(20, 36)
    a(f"""
    s_cmp_ge_u32 s2, 256
    s_cbranch_scc1 L_k1_end
    s_load_dwordx4 s[36:39], s[0:1], 0
    s_load_dwordx2 s[40:41], s[0:1], 40
    s_load_dwordx2 s[42:43], s[0:1], 56
    s_load_dwordx2 s[44:45], s[0:1], 80
    s_load_dwordx2 s[48:49], s[0:1], 24
    s_load_dwordx2 s[50:51], s[0:1], 48
    v_lshrrev_b32 v1, 6, v0
    v_and_b32 v2, 63, v0
    s_and_b32 s{sXCD}, s2, 7
    v_readfirstlane_b32 s{sWV}, v1
    s_lshr_b32 s{sIDX}, s2, 3
    s_and_b32 s{sRG}, s{sXCD}, 1
    s_lshr_b32 s{sCG}, s{sXCD}, 1
    s_and_b32 s{sRB}, s{sIDX}, 3
    s_lshl_b32 s{sTMP}, s{sRG}, 2
    s_add_u32 s{sRB}, s{sRB}, s{sTMP}
    s_lshr_b32 s{sCTL}, s{sIDX}, 2
    s_lshr_b32 s{sBR}, s{sCG}, 1
    s_and_b32 s{sTMP}, s{sCG}, 1
    s_lshl_b32 s{sC128}, s{sTMP}, 3
    s_add_u32 s{sC128}, s{sC128}, s{sCTL}
    v_and_b32 v3, 15, v2
    v_lshrrev_b32 v4, 4, v2
    s_waitcnt lgkmcnt(0)
    """)
    srd(a, S_X, 36, MATSZ)
    PK = 240
    srd_off(a, 52, 44, WS_WO, 1280 * 640 * 2)
    a(f'''
    s_lshl_b32 s{sTMP}, s{sWV}, 2
    v_add_u32 v8, s{sTMP}, v4
    v_min_u32 v8, 24, v8
    v_mul_u32_u24 v9, 52, v8
    v_lshrrev_b32 v9, 8, v9
    v_mul_u32_u24 v10, 5, v9
    v_sub_u32 v10, v8, v10
    s_lshr_b32 s{sTMP}, s2, 3
    s_and_b32 s{sTMP2}, s2, 7
    s_mul_i32 s{sSCALE}, s{sTMP}, 5
    v_add_u32 v11, s{sSCALE}, v9
    v_lshrrev_b32 v12, 2, v11
    v_and_b32 v11, 3, v11
    v_subrev_u32 v13, 20, v12
    v_cmp_gt_u32 vcc, 20, v12
    v_mul_u32_u24 v14, 10240, v12
    v_mul_u32_u24 v13, 10240, v13
    v_add_u32 v13, 5120, v13
    v_cndmask_b32 v13, v13, v14, vcc
    v_lshl_add_u32 v13, v10, 10, v13
    v_lshl_add_u32 v13, v11, 8, v13
    v_lshl_add_u32 v13, v3, 4, v13
    s_mul_i32 s{sSCALE}, s{sTMP2}, 204800
    v_add_u32 v{PK+8}, s{sSCALE}, v13
    s_mul_i32 s{sSCALE}, s{sTMP}, {20*1280}
    s_mul_i32 s{sTMP2}, s{sTMP2}, 160
    s_add_u32 s{sSCALE}, s{sSCALE}, s{sTMP2}
    v_lshlrev_b32 v11, 5, v10
    v_lshl_add_u32 v11, v3, 1, v11
    v_add_u32 v11, s{sSCALE}, v11
    ''')
    for hf in range(2):
        ad = PK + 10 + 2 * hf
        a(f'''
        v_lshl_add_u32 v12, v9, 1, {hf}
        v_cmp_gt_u32 vcc, 5, v12
        v_subrev_u32 v13, 5, v12
        v_mov_b32 v14, s50
        v_mov_b32 v15, s48
        v_cndmask_b32 v12, v13, v12, vcc
        v_cndmask_b32 v14, v14, v15, vcc
        v_mov_b32 v13, s51
        v_mov_b32 v15, s49
        v_cndmask_b32 v{ad+1}, v13, v15, vcc
        v_mul_u32_u24 v12, 5120, v12
        v_add_u32 v12, v12, v11
        v_add_co_u32 v{ad}, vcc, v14, v12
        s_nop 1
        v_addc_co_u32 v{ad+1}, vcc, 0, v{ad+1}, vcc
        ''')
        for e in range(4):
            a(f"global_load_ushort v{PK+4*hf+e}, v[{ad}:{ad+1}], off offset:{e*1280}")
    def pack_store():
        for i in range(4):
            a(f"v_lshl_or_b32 v{PK+i}, v{PK+2*i+1}, 16, v{PK+2*i}")
        a(f"buffer_store_dwordx4 {vr(PK,4)}, v{PK+8}, s[52:55], 0 offen")
    a(f"""
    s_cmp_eq_u32 s{sC128}, 15
    s_cbranch_scc1 L_k1_gate
    s_cmp_eq_u32 s{sBR}, 0
    s_cselect_b32 s{S_W}, s38, s40
    s_cselect_b32 s{S_W+1}, s39, s41
    s_mov_b32 s{S_W+2}, {640*3840}
    s_mov_b32 s{S_W+3}, 0x00020000
    """)
    a(f"""
    s_mul_i32 s{sMT}, s{sC128}, 52
    s_lshr_b32 s{sMT}, s{sMT}, 8
    s_mul_i32 s{sTMP}, s{sMT}, 5
    s_sub_u32 s{sCM0}, s{sC128}, s{sTMP}
    s_lshl_b32 s{sCM0}, s{sCM0}, 7
    s_mul_i32 s{sTMP}, s{sBR}, 3
    s_add_u32 s{sTMP}, s{sTMP}, s{sMT}
    s_mul_i32 s{sTMP}, s{sTMP}, {MATSZ}
    s_add_u32 s{S_O}, s44, s{sTMP}
    s_addc_u32 s{S_O+1}, s45, 0
    s_mov_b32 s{S_O+2}, {MATSZ}
    s_mov_b32 s{S_O+3}, 0x00020000
    s_lshl_b32 s{sT0}, s{sRB}, 8
    s_lshl_b32 s{sTMP}, s{sWV}, 5
    s_add_u32 s{sT0}, s{sT0}, s{sTMP}
    s_lshl_b32 s{sM0B}, s{sWV}, 10
    """)
    a(f"""
    v_add_u32 v5, s{sT0}, v3
    v_mul_u32_u24 v5, 1280, v5
    v_lshl_add_u32 v5, v4, 4, v5
    v_add_u32 v6, {16*1280}, v5
    """)
    a(f"""
    s_lshr_b32 s{sTMP}, s{sWV}, 1
    s_and_b32 s{sTMP}, s{sTMP}, 1
    s_lshl_b32 s{sTMP}, s{sTMP}, 2
    v_or_b32 v8, s{sTMP}, v4
    v_lshrrev_b32 v9, 1, v3
    v_xor_b32 v8, v8, v9
    v_lshlrev_b32 v8, 5, v8
    v_and_b32 v9, 1, v3
    v_lshl_add_u32 v8, v9, 4, v8
    s_lshl_b32 s{sTMP}, s{sWV}, 2
    v_add_u32 v7, s{sTMP}, v4
    v_mul_u32_u24 v7, 3840, v7
    v_add_u32 v7, v7, v8
    s_lshl_b32 s{sTMP}, s{sC128}, 8
    v_add_u32 v7, s{sTMP}, v7
    """)
    ACC, WF, XR = 24, 88, 120
    R = D + 1
    assert XR + 8 * R <= 240
    TRA = 16
    def issue_loads(s):
        a(f"s_add_u32 m0, s{sM0B}, {s*8192}")
        a(f"s_mov_b32 s{sTMP2}, {s*32*3840}")
        a(f"buffer_load_dwordx4 v7, s[{S_W}:{S_W+3}], s{sTMP2} offen lds")
        a.vm_issue(("w", s))
        xb = XR + 8 * (s % R)
        a(f"buffer_load_dwordx4 {vr(xb,4)}, v5, s[{S_X}:{S_X+3}], 0 offen offset:{s*64}")
        a.vm_issue(("x", s))
        a(f"buffer_load_dwordx4 {vr(xb+4,4)}, v6, s[{S_X}:{S_X+3}], 0 offen offset:{s*64}")
        a.vm_issue(("x", s))
    for s in range(D):
        issue_loads(s)
    a(f"""
    v_lshrrev_b32 v8, 2, v3
    v_and_b32 v9, 3, v3
    v_and_b32 v10, 1, v4
    v_lshl_or_b32 v10, v10, 2, v8
    v_lshl_add_u32 v11, v4, 3, v8
    v_lshlrev_b32 v11, 8, v11
    v_lshl_add_u32 v11, v9, 3, v11
    """)
    for nt in range(8):
        a(f"v_xor_b32 v12, {nt}, v10")
        a(f"v_lshl_add_u32 v{TRA+nt}, v12, 5, v11")
    a(f"""
    s_cmp_eq_u32 s{sMT}, 2
    s_cbranch_scc1 L_k1_ntype
    """)
    vm0 = list(a.vm)
    PF = 4
    def mainloop(ttype):
        a.vm = list(vm0)
        lg = []
        def rd(item):
            s, nt = divmod(item, 8)
            if s > 0 and s % 8 == 0:
                a(f"v_add_u32 v{TRA+nt}, 0x10000, v{TRA+nt}")
            f = WF + 4 * (item % 8)
            off = (s % 8) * 8192
            a(f"ds_read_b64_tr_b16 {vr(f,2)}, v{TRA+nt} offset:{off}")
            a(f"ds_read_b64_tr_b16 {vr(f+2,2)}, v{TRA+nt} offset:{off+1024}")
            lg.append(item); lg.append(item)
        def lgwait(item):
            idx = max(i for i, t in enumerate(lg) if t == item)
            n = len(lg) - 1 - idx
            a(f"s_waitcnt lgkmcnt({n})")
            del lg[:idx + 1]
        a.vm_wait(("x", 1))
        a("s_barrier")
        for it in range(PF):
            rd(it)
        for item in range(160):
            s, nt = divmod(item, 8)
            if nt == 0 and s + D < 20:
                issue_loads(s + D)
            if nt == 8 - PF and s % 2 == 1 and s < 19:
                a.vm_wait(("x", s + 2))
                a("s_barrier")
            if item + PF < 160:
                rd(item + PF)
            lgwait(item)
            f = WF + 4 * (item % 8)
            xb = XR + 8 * (s % R)
            for mi in range(2):
                acc = ACC + 4 * (2 * nt + mi)
                c = "0" if s == 0 else vr(acc, 4)
                if ttype:
                    a(f"v_mfma_f32_16x16x32_bf16 {vr(acc,4)}, {vr(f,4)}, {vr(xb+4*mi,4)}, {c}")
                else:
                    a(f"v_mfma_f32_16x16x32_bf16 {vr(acc,4)}, {vr(xb+4*mi,4)}, {vr(f,4)}, {c}")
    mainloop(True)
    pack_store()
    a(f"""
    s_cmp_eq_u32 s{sMT}, 0
    s_cselect_b32 s{sSCALE}, {f32bits(LOG2E * 20 ** -0.5)}, 1.0
    s_cmp_eq_u32 s{sBR}, 0
    s_cselect_b32 s{sSCALE}, {f32bits(LOG2E)}, s{sSCALE}
    v_add_u32 v5, s{sT0}, v3
    v_lshlrev_b32 v5, 3, v5
    v_lshl_add_u32 v5, v4, 14, v5
    s_lshl_b32 s{sTMP}, s{sCM0}, 12
    """)
    for nt in range(8):
        for mi in range(2):
            acc = ACC + 4 * (2 * nt + mi)
            for r in range(4):
                a(f"v_mul_f32 v{acc+r}, s{sSCALE}, v{acc+r}")
            a(f"v_cvt_pk_bf16_f32 v{acc}, v{acc}, v{acc+1}")
            a(f"v_cvt_pk_bf16_f32 v{acc+1}, v{acc+2}, v{acc+3}")
            a(f"buffer_store_dwordx2 {vr(acc,2)}, v5, s[{S_O}:{S_O+3}], s{sTMP} offen offset:{mi*128}")
        if nt < 7:
            a(f"s_add_u32 s{sTMP}, s{sTMP}, 0x10000")
    a("s_endpgm")
    a.label("L_k1_ntype")
    mainloop(False)
    pack_store()
    a(f"""
    s_lshr_b32 s{sTMP}, s{sT0}, 5
    s_mul_i32 s{sTMP}, s{sTMP}, 1280
    v_lshrrev_b32 v5, 1, v4
    v_mul_u32_u24 v5, 320, v5
    v_and_b32 v6, 1, v4
    v_lshl_add_u32 v5, v6, 3, v5
    v_add_u32 v6, s{sCM0}, v3
    v_lshl_add_u32 v5, v6, 4, v5
    s_mov_b32 s{sTMP2}, 81600
    """)
    for nt in range(8):
        a(f"v_mul_u32_u24 v7, 3277, v6")
        a(f"v_lshrrev_b32 v7, 16, v7")
        a(f"v_mad_u32_u24 v7, v7, s{sTMP2}, v5")
        for mi in range(2):
            acc = ACC + 4 * (2 * nt + mi)
            a(f"v_cvt_pk_bf16_f32 v{acc}, v{acc}, v{acc+1}")
            a(f"v_cvt_pk_bf16_f32 v{acc+1}, v{acc+2}, v{acc+3}")
            a(f"buffer_store_dwordx2 {vr(acc,2)}, v7, s[{S_O}:{S_O+3}], s{sTMP} offen offset:{mi*640 + nt*256}")
        if nt < 7:
            a(f"v_add_u32 v6, 16, v6")
    a("s_endpgm")
    a.label("L_k1_gate")
    srd(a, S_W, 42, 1280)
    srd_off(a, S_O, 44, WS_GATE, 8192)
    a(f"""
    s_lshl_b32 s{sT0}, s{sBR}, 3
    s_add_u32 s{sT0}, s{sT0}, s{sRB}
    s_lshl_b32 s{sT0}, s{sT0}, 7
    s_lshl_b32 s{sTMP}, s{sWV}, 4
    s_add_u32 s{sT0}, s{sT0}, s{sTMP}
    v_add_u32 v5, s{sT0}, v3
    v_lshlrev_b32 v7, 2, v5
    v_mul_u32_u24 v5, 1280, v5
    v_lshl_add_u32 v5, v4, 4, v5
    v_lshlrev_b32 v6, 4, v4
    """)
    for s in range(20):
        a(f"buffer_load_dwordx4 {vr(16+8*s,4)}, v5, s[{S_X}:{S_X+3}], 0 offen offset:{s*64}")
        a(f"buffer_load_dwordx4 {vr(20+8*s,4)}, v6, s[{S_W}:{S_W+3}], 0 offen offset:{s*64}")
    for s in range(20):
        a(f"s_waitcnt vmcnt({38-2*s})")
        c = "0" if s == 0 else "v[8:11]"
        a(f"v_mfma_f32_16x16x32_bf16 v[8:11], {vr(20+8*s,4)}, {vr(16+8*s,4)}, {c}")
    pack_store()
    a(f"""
    s_nop 7
    v_cvt_pk_bf16_f32 v8, v8, v8
    v_lshlrev_b32 v8, 16, v8
    v_mul_f32 v8, {f32bits(-LOG2E)}, v8
    v_exp_f32 v8, v8
    s_nop 0
    v_add_f32 v8, 1.0, v8
    v_rcp_f32 v8, v8
    s_nop 0
    v_cvt_pk_bf16_f32 v8, v8, v8
    v_lshlrev_b32 v8, 16, v8
    v_cmp_gt_u32 vcc, 16, v2
    s_and_saveexec_b64 s[46:47], vcc
    buffer_store_dword v8, v7, s[{S_O}:{S_O+3}], 0 offen
    """)
    a.label("L_k1_end")
    a("s_endpgm")
    return a.text(), kernel_desc(name, 256, 64), f"; @launch kernel={name} grid=(256,1,1) block=(512,1,1) lds=163840"
```

```python
from asmlib import *
from layout import *

SLOT = 40960
SCR = 3 * SLOT
KVT = SCR + 32768
ONES = 0x3f803f80

def gen_k2(name="k2_kernel"):
    a = Asm()
    a.raw(kernel_header(name))
    S_WS, S_PHI = 8, 12
    sDBG = 16
    (sH, sMB, sWV, sQP, sKH, sT, sT2, sSTEP, sDINC, sM0, sKB, sTOK) = range(18, 30)
    sD = 30
    sLO, sVM, sONE = 36, 38, 40
    sSLOTINC = 42
    sTMP3 = 43
    vTID, vL, vI, vHH, vT8, vKA, vVA, vX0, vX1, vX2, vX3, vL16, vGA, vGB, vPOLL = range(0, 15)
    QF = 16
    KF = 28
    VF = 36
    SS = 48
    PP = 80
    OO = 96
    EQ = 128
    WP = 140
    XA = 146
    KVL = 160
    VAF = 192
    Qa1, Qa2, Qb1, Qb2 = QF, QF + 4, QF + 6, QF + 10
    a(f"""
    s_cmp_ge_u32 s2, 256
    s_cbranch_scc1 L_k2_end
    s_load_dwordx2 s[4:5], s[0:1], 16
    s_load_dwordx4 s[44:47], s[0:1], 72
    v_lshrrev_b32 v{vX0}, 6, v0
    v_and_b32 v{vL}, 63, v0
    s_and_b32 s{sT}, s2, 7
    v_readfirstlane_b32 s{sWV}, v{vX0}
    s_lshr_b32 s{sT2}, s2, 3
    s_and_b32 s{sMB}, s{sT2}, 7
    s_lshr_b32 s{sT2}, s{sT2}, 3
    s_lshl_b32 s{sH}, s{sT}, 2
    s_add_u32 s{sH}, s{sH}, s{sT2}
    v_and_b32 v{vI}, 31, v{vL}
    v_lshrrev_b32 v{vHH}, 5, v{vL}
    v_lshlrev_b32 v{vT8}, 3, v{vI}
    v_lshlrev_b32 v{vL16}, 4, v{vL}
    s_and_b32 s{sQP}, s{sWV}, 3
    s_lshr_b32 s{sKH}, s{sWV}, 2
    s_mov_b32 s{sLO}, -1
    s_mov_b32 s{sLO+1}, 0
    s_mov_b32 s{sVM}, 0xfffff
    s_mov_b32 s{sVM+1}, 0xfffff
    s_mov_b32 s{sONE}, {(1<<25)|(1<<29)}
    s_mov_b32 s{sONE+1}, {(1<<25)|(1<<29)}
    s_mul_i32 s{sKB}, s{sH}, 81920
    s_waitcnt lgkmcnt(0)
    s_mov_b32 s{sDBG}, s44
    s_mov_b32 s{sDBG+1}, s45
    """)
    srd(a, S_WS, 46, WS_END)
    srd(a, S_PHI, 4, 25600)
    WS = f"s[{S_WS}:{S_WS+3}]"
    a(f"""
    v_mul_u32_u24 v{vVA}, 320, v{vHH}
    v_lshl_add_u32 v{vVA}, v{vI}, 4, v{vVA}
    s_cmp_ge_u32 s{sWV}, 2
    s_cbranch_scc1 L_k2_nova
    """)
    for r in range(64):
        a(f"v_mov_b32 v{VAF+r}, {ONES}")
    a(f"""
    s_mul_i32 s{sT}, s{sMB}, 10240
    s_add_u32 s{sT}, s{sT}, s{sKB}
    s_add_u32 s{sT}, s{sT}, {WS_QKV + 2*MATSZ}
    s_mov_b64 exec, s[{sVM}:{sVM+1}]
    """)
    for i in range(16):
        if i % 4 == 0 and i > 0:
            a(f"s_add_u32 s{sT}, s{sT}, 2560")
        a(f"buffer_load_dwordx4 {vr(VAF+4*i,4)}, v{vVA}, {WS}, s{sT} offen offset:{(i%4)*640}")
    a("s_mov_b64 exec, -1")
    a.label("L_k2_nova")
    a(f"""
    v_subrev_u32 v{vX0}, 2, v{vI}
    v_max_i32 v{vX0}, 17, v{vX0}
    v_min_i32 v{vX0}, v{vX0}, v{vI}
    v_min_i32 v{vX0}, 19, v{vX0}
    v_lshlrev_b32 v{vX0}, 1, v{vX0}
    v_mul_u32_u24 v{vX1}, 320, v{vHH}
    v_add_u32 v{vX0}, v{vX0}, v{vX1}
    s_mul_i32 s{sT}, s{sH}, 800
    """)
    WT = KVL
    for e in range(4):
        a(f"v_mov_b32 v{WT+8+e}, 0")
    for e in range(8):
        a(f"buffer_load_ushort v{WT+e}, v{vX0}, s[{S_PHI}:{S_PHI+3}], s{sT} offen offset:{e*40}")
        a.vm_issue("wp")
    a(f"s_mov_b64 exec, s[{sLO}:{sLO+1}]")
    for e in range(4):
        a(f"buffer_load_ushort v{WT+8+e}, v{vX0}, s[{S_PHI}:{S_PHI+3}], s{sT} offen offset:{640+e*40}")
        a.vm_issue("wp")
    a("s_mov_b64 exec, -1")
    a(f"v_lshl_add_u32 v{vX1}, v{vHH}, 15, v{vT8}")
    def load_tfrag(dst, matoff, tokexpr_s, tag):
        a(f"s_add_u32 s{sT}, s{tokexpr_s}, s{sKB}")
        a(f"s_add_u32 s{sT}, s{sT}, {matoff}")
        a(f"buffer_load_dwordx2 {vr(dst,2)}, v{vX1}, {WS}, s{sT} offen"); a.vm_issue(tag)
        a(f"s_add_u32 s{sT2}, s{sT}, 16384")
        a(f"buffer_load_dwordx2 {vr(dst+2,2)}, v{vX1}, {WS}, s{sT2} offen"); a.vm_issue(tag)
        a(f"s_add_u32 s{sT2}, s{sT}, 65536")
        a(f"buffer_load_dwordx2 {vr(dst+4,2)}, v{vT8}, {WS}, s{sT2} offen"); a.vm_issue(tag)
    a(f"""
    s_lshl_b32 s{sTOK}, s{sMB}, 3
    s_add_u32 s{sTOK}, s{sTOK}, s{sWV}
    s_lshl_b32 s{sTOK}, s{sTOK}, 8
    """)
    load_tfrag(XA, WS_QKV + 1 * MATSZ, sTOK, "ka")
    load_tfrag(XA + 6, WS_QKV + 0 * MATSZ, sTOK, "qa")
    a(f"""
    s_mul_i32 s{sT}, s{sQP}, 5
    s_mul_i32 s{sM0}, s{sWV}, 5120
    s_bitcmp1_b32 s{sWV}, 1
    s_cbranch_scc1 L_k2_dmav
    s_lshl_b32 s{sT2}, s{sKH}, 13
    s_add_u32 s{sT2}, s{sT2}, s{sKB}
    s_add_u32 s{sT2}, s{sT2}, {WS_QKV + 4*MATSZ}
    s_mov_b32 s{sDINC}, 2048
    """)
    for ii in range(5):
        a(f"""
        s_add_u32 s{sTMP3}, s{sT}, {ii}
        s_lshr_b32 s{sD+ii}, s{sTMP3}, 1
        s_lshl_b32 s{sD+ii}, s{sD+ii}, 14
        s_and_b32 s{sTMP3}, s{sTMP3}, 1
        s_lshl_b32 s{sTMP3}, s{sTMP3}, 10
        s_add_u32 s{sD+ii}, s{sD+ii}, s{sTMP3}
        s_add_u32 s{sD+ii}, s{sD+ii}, s{sT2}
        """)
    a("s_branch L_k2_dmadone")
    a.label("L_k2_dmav")
    a(f"""
    s_mul_i32 s{sT2}, s{sKH}, 40960
    s_add_u32 s{sT2}, s{sT2}, s{sKB}
    s_add_u32 s{sT2}, s{sT2}, {WS_QKV + 5*MATSZ - 10240}
    s_lshl_b32 s{sT}, s{sT}, 10
    s_add_u32 s{sT2}, s{sT2}, s{sT}
    s_mov_b32 s{sDINC}, 10240
    """)
    for ii in range(5):
        a(f"s_add_u32 s{sD+ii}, s{sT2}, {ii*1024}")
    a.label("L_k2_dmadone")
    def dma(slot, tag):
        for ii in range(5):
            a(f"s_add_u32 m0, s{sM0}, {slot*SLOT + ii*1024}")
            a("s_nop 0")
            a(f"buffer_load_dwordx4 v{vL16}, {WS}, s{sD+ii} offen lds")
            a(f"s_add_u32 s{sD+ii}, s{sD+ii}, s{sDINC}")
            if tag: a.vm_issue(tag)
    dma(0, "d0")
    a(f"""
    s_lshl_b32 s{sTMP3}, s{sMB}, 2
    s_add_u32 s{sTMP3}, s{sTMP3}, s{sQP}
    s_lshl_b32 s{sTMP3}, s{sTMP3}, 9
    """)
    load_tfrag(Qa1, WS_QKV + 3 * MATSZ, sTMP3, "qb")
    a(f"s_add_u32 s{sTMP3}, s{sTMP3}, 256")
    load_tfrag(Qb1, WS_QKV + 3 * MATSZ, sTMP3, "qb")
    a(f"""
    v_lshlrev_b32 v{vX0}, 2, v{vI}
    s_lshr_b32 s{sT}, s{sTOK}, 1
    s_add_u32 s{sT}, s{sT}, {WS_GATE}
    buffer_load_dword v{vGA}, v{vX0}, {WS}, s{sT} offen
    s_lshl_b32 s{sT}, s{sMB}, 3
    s_lshl_b32 s{sT2}, s{sQP}, 1
    s_add_u32 s{sT}, s{sT}, s{sT2}
    s_add_u32 s{sT}, s{sT}, s{sKH}
    s_lshl_b32 s{sT}, s{sT}, 7
    s_add_u32 s{sT}, s{sT}, {WS_GATE}
    buffer_load_dword v{vGB}, v{vX0}, {WS}, s{sT} offen
    """)
    a.vm_issue("g"); a.vm_issue("g")
    dma(1, "d1")
    dma(2, "d2")

    T = SS
    EP = SS + 16
    EM = PP
    def phi(xf, normalize):
        a(f"v_mfma_f32_32x32x16_bf16 {vr(T,16)}, {vr(WP,4)}, {vr(xf,4)}, 0")
        a(f"v_mfma_f32_32x32x8_bf16 {vr(T,16)}, {vr(WP+4,2)}, {vr(xf+4,2)}, {vr(T,16)}")
        a("s_nop 11")
        mx, mn = vX0, vX1
        a(f"v_max3_f32 v{mx}, v{T}, v{T+1}, v{T+2}")
        a(f"v_min3_f32 v{mn}, v{T}, v{T+1}, v{T+2}")
        for i in (3, 5, 7):
            a(f"v_max3_f32 v{mx}, v{mx}, v{T+i}, v{T+i+1}")
            a(f"v_min3_f32 v{mn}, v{mn}, v{T+i}, v{T+i+1}")
        a(f"v_max_f32 v{mx}, v{mx}, v{T+9}")
        a(f"v_min_f32 v{mn}, v{mn}, v{T+9}")
        a(f"v_mov_b32 v{vX2}, v{mx}")
        a(f"v_mov_b32 v{vX3}, v{mn}")
        a("s_nop 1")
        a(f"v_permlane32_swap_b32 v{mx}, v{vX2}")
        a(f"v_permlane32_swap_b32 v{mn}, v{vX3}")
        a("s_nop 0")
        a(f"v_max_f32 v{mx}, v{mx}, v{vX2}")
        a(f"v_min_f32 v{mn}, v{mn}, v{vX3}")
        for i in range(10):
            a(f"v_sub_f32 v{EP+i}, v{T+i}, v{mx}")
            a(f"v_sub_f32 v{EM+i}, v{mn}, v{T+i}")
        for i in range(10):
            a(f"v_exp_f32 v{EP+i}, v{EP+i}")
            a(f"v_exp_f32 v{EM+i}, v{EM+i}")
        if normalize:
            sp, sm = vX0, vX1
            a(f"v_add_f32 v{sp}, v{EP}, v{EP+1}")
            a(f"v_add_f32 v{sm}, v{EM}, v{EM+1}")
            for i in range(2, 10):
                a(f"v_add_f32 v{sp}, v{sp}, v{EP+i}")
                a(f"v_add_f32 v{sm}, v{sm}, v{EM+i}")
            a(f"v_mov_b32 v{vX2}, v{sp}")
            a(f"v_mov_b32 v{vX3}, v{sm}")
            a("s_nop 1")
            a(f"v_permlane32_swap_b32 v{sp}, v{vX2}")
            a(f"v_permlane32_swap_b32 v{sm}, v{vX3}")
            a("s_nop 0")
            a(f"v_add_f32 v{sp}, v{sp}, v{vX2}")
            a(f"v_add_f32 v{sm}, v{sm}, v{vX3}")
            a(f"v_rcp_f32 v{sp}, v{sp}")
            a(f"v_rcp_f32 v{sm}, v{sm}")
            a("s_nop 0")
            for i in range(10):
                a(f"v_mul_f32 v{EP+i}, v{EP+i}, v{sp}")
                a(f"v_mul_f32 v{EM+i}, v{EM+i}, v{sm}")
        else:
            a("s_nop 0")
        for i in range(5):
            a(f"v_cvt_pk_bf16_f32 v{EQ+i}, v{EP+2*i}, v{EP+2*i+1}")
            a(f"v_cvt_pk_bf16_f32 v{EQ+6+i}, v{EM+2*i}, v{EM+2*i+1}")
    a(f"v_mov_b32 v{EQ+5}, 0")
    a(f"v_mov_b32 v{EQ+11}, 0")
    a.vm_wait("ka")
    for i in range(6):
        a(f"v_lshl_or_b32 v{WP+i}, v{WT+2*i+1}, 16, v{WT+2*i}")
    a("s_nop 1")
    phi(XA, True)
    a(f"""
    s_mul_i32 s{sT}, s{sWV}, {32*48}
    s_add_u32 s{sT}, s{sT}, {SCR}
    v_mul_u32_u24 v{vX0}, 48, v{vI}
    v_lshl_add_u32 v{vX0}, v{vHH}, 3, v{vX0}
    v_add_u32 v{vX0}, s{sT}, v{vX0}
    """)
    for sg in range(2):
        for c in range(3):
            a(f"ds_write_b64 v{vX0}, {vr(EQ+6*sg+2*c,2)} offset:{sg*12288 + c*16}")
    a.vm_wait("qa")
    a("s_waitcnt lgkmcnt(0)")
    phi(XA + 6, False)
    a(f"""
    v_and_b32 v{vX0}, 0x13, v{vI}
    v_and_b32 v{vX1}, 4, v{vI}
    v_lshl_or_b32 v{vX0}, v{vX1}, 1, v{vX0}
    v_and_b32 v{vX1}, 8, v{vI}
    v_lshrrev_b32 v{vX1}, 1, v{vX1}
    v_or_b32 v{vX0}, v{vX0}, v{vX1}
    v_lshlrev_b32 v{vX0}, 3, v{vX0}
    v_lshl_add_u32 v{vKA}, v{vHH}, 12, v{vX0}
    s_mul_i32 s{sT}, s{sKH}, 20480
    s_add_u32 s{sT2}, s{sT}, 10240
    v_add_u32 v{vVA}, s{sT2}, v{vVA}
    """)
    a(f"v_mov_b32 v{KF+4}, {ONES}")
    a(f"v_mov_b32 v{KF+5}, 0x00003f80")
    for r in range(8):
        a(f"v_mov_b32 v{VF+r}, {ONES}")
    a.vm_wait("g")
    a(f"""
    s_mov_b64 exec, s[{sLO}:{sLO+1}]
    s_not_b64 exec, exec
    v_mov_b32 v{Qa2}, 0
    v_mov_b32 v{Qa2+1}, 0
    v_mov_b32 v{Qb2}, 0
    v_mov_b32 v{Qb2+1}, 0
    s_mov_b64 exec, -1
    s_barrier
    """)
    def kread(off):
        a(f"ds_read_b64 {vr(KF,2)}, v{vKA} offset:{off}")
        a(f"ds_read_b64 {vr(KF+2,2)}, v{vKA} offset:{off+2048}")
        a(f"s_mov_b64 exec, s[{sLO}:{sLO+1}]")
        a(f"ds_read_b64 {vr(KF+4,2)}, v{vKA} offset:{off+8192}")
        a("s_mov_b64 exec, -1")
    def vread(off):
        a(f"s_mov_b64 exec, s[{sVM}:{sVM+1}]")
        a(f"ds_read_b128 {vr(VF,4)}, v{vVA} offset:{off}")
        a(f"ds_read_b128 {vr(VF+4,4)}, v{vVA} offset:{off+640}")
        a("s_mov_b64 exec, -1")
    kread(0)
    a(f"v_add_u32 v{vKA}, s{sT}, v{vKA}")
    a(f"""
    s_cmp_ge_u32 s{sWV}, 2
    s_cbranch_scc1 L_k2_nokv
    v_lshrrev_b32 v{vX0}, 2, v{vL}
    v_and_b32 v{vX0}, 3, v{vX0}
    v_lshl_add_u32 v{vX0}, v{vHH}, 3, v{vX0}
    v_mul_u32_u24 v{vX0}, 48, v{vX0}
    v_and_b32 v{vX1}, 16, v{vL}
    v_lshl_add_u32 v{vX0}, v{vX1}, 1, v{vX0}
    v_and_b32 v{vX1}, 3, v{vL}
    v_lshl_add_u32 v{vX0}, v{vX1}, 3, v{vX0}
    s_mul_i32 s{sT}, s{sWV}, 12288
    s_add_u32 s{sT}, s{sT}, {SCR}
    v_add_u32 v{vX0}, s{sT}, v{vX0}
    """)
    for b in range(2):
        for i in range(8):
            t = 8 * b + i
            a(f"ds_read_b64_tr_b16 {vr(KVL+4*i,2)}, v{vX0} offset:{t*16*48}")
            a(f"ds_read_b64_tr_b16 {vr(KVL+4*i+2,2)}, v{vX0} offset:{t*16*48+4*48}")
        a("s_waitcnt lgkmcnt(0)")
        for i in range(8):
            t = 8 * b + i
            c = "0" if t == 0 else vr(OO, 16)
            a(f"v_mfma_f32_32x32x16_bf16 {vr(OO,16)}, {vr(KVL+4*i,4)}, {vr(VAF+4*t,4)}, {c}")
    a(f"""
    s_lshl_b32 s{sT}, s{sH}, 3
    s_add_u32 s{sT}, s{sT}, s{sMB}
    s_lshl_b32 s{sT}, s{sT}, 1
    s_add_u32 s{sT}, s{sT}, s{sWV}
    s_mul_i32 s{sT}, s{sT}, 3072
    s_add_u32 s{sT}, s{sT}, {WS_KVP}
    s_nop 6
    """)
    for c in range(3):
        a(f"buffer_store_dwordx4 {vr(OO+4*c,4)}, v{vL16}, {WS}, s{sT} offen offset:{c*1024} sc1")
    a("s_nop 1")
    a.label("L_k2_nokv")
    a("s_waitcnt lgkmcnt(0)")
    Sa, Sb = SS, SS + 16
    for (S, q1, q2) in ((Sa, Qa1, Qa2), (Sb, Qb1, Qb2)):
        a(f"v_mfma_f32_32x32x16_bf16 {vr(S,16)}, {vr(KF,4)}, {vr(q1,4)}, 0")
        a(f"v_mfma_f32_32x32x8_bf16 {vr(S,16)}, {vr(KF+4,2)}, {vr(q2,2)}, {vr(S,16)}")
    kread(0)
    for r in range(32):
        a(f"v_mov_b32 v{OO+r}, 0")
    for r in range(8):
        a(f"v_mov_b32 v{PP+8+r}, 0")
    def setm(S, q2):
        m = vX0
        a(f"v_max3_f32 v{m}, v{S}, v{S+1}, v{S+2}")
        for i in range(3, 15, 2):
            a(f"v_max3_f32 v{m}, v{m}, v{S+i}, v{S+i+1}")
        a(f"v_max_f32 v{m}, v{m}, v{S+15}")
        a(f"v_mov_b32 v{vX1}, v{m}")
        a("s_nop 1")
        a(f"v_permlane32_swap_b32 v{m}, v{vX1}")
        a("s_nop 0")
        a(f"v_max_f32 v{m}, v{m}, v{vX1}")
        a(f"v_sub_f32 v{m}, 0, v{m}")
        a(f"v_and_b32 v{vX1}, 0xffff0000, v{m}")
        a(f"v_sub_f32 v{m}, v{m}, v{vX1}")
        a(f"v_and_b32 v{vX2}, 0xffff0000, v{m}")
        a(f"v_sub_f32 v{m}, v{m}, v{vX2}")
        a(f"s_mov_b64 exec, s[{sLO}:{sLO+1}]")
        a(f"s_not_b64 exec, exec")
        a(f"v_lshrrev_b32 v{vX1}, 16, v{vX1}")
        a(f"v_or_b32 v{q2}, v{vX1}, v{vX2}")
        a(f"v_lshrrev_b32 v{q2+1}, 16, v{m}")
        a(f"s_mov_b64 exec, -1")
    setm(Sa, Qa2)
    setm(Sb, Qb2)
    a(f"""
    s_waitcnt lgkmcnt(0)
    s_mov_b32 s{sSTEP}, 0
    v_mfma_f32_32x32x16_bf16 {vr(Sa,16)}, {vr(KF,4)}, {vr(Qa1,4)}, 0
    v_mfma_f32_32x32x8_bf16 {vr(Sa,16)}, {vr(KF+4,2)}, {vr(Qa2,2)}, {vr(Sa,16)}
    s_nop 10
    """)
    a.raw(".p2align 6")
    a.label("L_k2_loop")
    Pa, Pb, Oa, Ob = PP, PP + 8, OO, OO + 16
    def half(X, t):
        even = (X == 0)
        Sx, Px = (Sa, Pa) if even else (Sb, Pb)
        Sy, Py, Oy, q1, q2 = (Sb, Pb, Ob, Qb1, Qb2) if even else (Sa, Pa, Oa, Qa1, Qa2)
        def ex(i): a(f"v_exp_f32 v{Sx+i}, v{Sx+i}")
        def cv(i): a(f"v_cvt_pk_bf16_f32 v{Px+i}, v{Sx+2*i}, v{Sx+2*i+1}")
        if not even: a("s_waitcnt lgkmcnt(2)")
        a(f"v_mfma_f32_32x32x16_bf16 {vr(Sy,16)}, {vr(KF,4)}, {vr(q1,4)}, 0")
        for i in range(0, 5): ex(i)
        a(f"v_mfma_f32_32x32x8_bf16 {vr(Sy,16)}, {vr(KF+4,2)}, {vr(q2,2)}, {vr(Sy,16)}")
        if even:
            if t == 7:
                boundary()
                kread(0)
            else:
                kread((t + 1) * 256)
        cv(0); cv(1)
        for i in range(5, 9): ex(i)
        if not even: a("s_waitcnt lgkmcnt(0)")
        a(f"v_mfma_f32_32x32x16_bf16 {vr(Oy,16)}, {vr(VF,4)}, {vr(Py,4)}, {vr(Oy,16)}")
        cv(2); cv(3)
        for i in range(9, 13): ex(i)
        a(f"v_mfma_f32_32x32x16_bf16 {vr(Oy,16)}, {vr(VF+4,4)}, {vr(Py+4,4)}, {vr(Oy,16)}")
        if even:
            vread(t * 1280)
        cv(4); cv(5)
        for i in range(13, 16): ex(i)
        cv(6); cv(7)
    def boundary():
        L1, L2, L3, L4, L5, LS = [a.newlabel("bd") for _ in range(6)]
        a(f"""
        s_waitcnt vmcnt(0)
        s_cmp_eq_u32 s{sSTEP}, 0
        s_cbranch_scc0 {L1}
        s_cmp_lt_u32 s{sWV}, 2
        s_cbranch_scc0 {L2}
        s_lshl_b32 s{sT}, s{sH}, 2
        v_mov_b32 v{vX0}, s{sT}
        v_mov_b32 v{vX1}, 1
        s_mov_b64 exec, 1
        global_atomic_add v{vX0}, v{vX1}, s[{sDBG}:{sDBG+1}]
        s_mov_b64 exec, -1
        s_branch {L2}
        """)
        a.label(L1)
        a(f"""
        s_cmp_eq_u32 s{sSTEP}, 2
        s_cbranch_scc0 {L2}
        s_cmp_eq_u32 s{sWV}, 0
        s_cbranch_scc0 {L2}
        """)
        a.label(LS)
        a(f"""
        v_readfirstlane_b32 s{sT}, v{vPOLL}
        s_nop 3
        s_cmp_ge_u32 s{sT}, 16
        s_cbranch_scc1 {L2}
        s_sleep 2
        s_lshl_b32 s{sT}, s{sH}, 2
        v_mov_b32 v{vX0}, s{sT}
        global_load_dword v{vPOLL}, v{vX0}, s[{sDBG}:{sDBG+1}] sc1
        s_waitcnt vmcnt(0)
        s_branch {LS}
        """)
        a.label(L2)
        a(f"""
        s_barrier
        s_mov_b32 s{sSLOTINC}, {SLOT}
        s_cmp_eq_u32 s{sSTEP}, 1
        s_cbranch_scc0 {L3}
        """)
        dma(0, None)
        a(f"""
        s_lshl_b32 s{sT}, s{sH}, 2
        v_mov_b32 v{vX0}, s{sT}
        global_load_dword v{vPOLL}, v{vX0}, s[{sDBG}:{sDBG+1}] sc1
        s_branch {L4}
        """)
        a.label(L3)
        a(f"""
        s_cmp_eq_u32 s{sSTEP}, 2
        s_cbranch_scc0 {L4}
        s_mov_b32 s{sSLOTINC}, {-2*SLOT}
        s_cmp_lt_u32 s{sWV}, 6
        s_cbranch_scc0 {L4}
        s_mul_i32 s{sT}, s{sH}, {8*6144}
        s_lshl_b32 s{sT2}, s{sWV}, 10
        s_add_u32 s{sT}, s{sT}, s{sT2}
        s_add_u32 s{sT}, s{sT}, {WS_KVP}
        """)
        for p in range(8):
            a(f"buffer_load_dwordx4 {vr(KVL+4*p,4)}, v{vL16}, {WS}, s{sT} offen sc1")
            if p < 7: a(f"s_add_u32 s{sT}, s{sT}, 6144")
        a.label(L4)
        a(f"v_add_u32 v{vKA}, s{sSLOTINC}, v{vKA}")
    for t in range(8):
        half(0, t)
        half(1, t)
    a(f"""
    v_add_u32 v{vVA}, s{sSLOTINC}, v{vVA}
    s_add_u32 s{sSTEP}, s{sSTEP}, 1
    s_cmp_lt_u32 s{sSTEP}, 4
    s_cbranch_scc1 L_k2_loop
    s_nop 1
    v_mfma_f32_32x32x16_bf16 {vr(Ob,16)}, {vr(VF,4)}, {vr(Pb,4)}, {vr(Ob,16)}
    v_mfma_f32_32x32x16_bf16 {vr(Ob,16)}, {vr(VF+4,4)}, {vr(Pb+4,4)}, {vr(Ob,16)}
    """)
    a(f"""
    s_cmp_lt_u32 s{sWV}, 6
    s_cbranch_scc0 L_k2_nokvsum
    """)
    for p in range(1, 8):
        for r in range(4):
            a(f"v_add_f32 v{KVL+r}, v{KVL+r}, v{KVL+4*p+r}")
    a(f"""
    v_cvt_pk_bf16_f32 v{KVL}, v{KVL}, v{KVL+1}
    v_cvt_pk_bf16_f32 v{KVL+1}, v{KVL+2}, v{KVL+3}
    s_lshl_b32 s{sT}, s{sWV}, 9
    s_add_u32 s{sT}, s{sT}, {KVT}
    v_lshrrev_b32 v{vX0}, 1, v{vL16}
    v_add_u32 v{vX0}, s{sT}, v{vX0}
    ds_write_b64 v{vX0}, {vr(KVL,2)}
    """)
    a.label("L_k2_nokvsum")
    a(f"""
    s_lshl_b32 s{sT}, s{sWV}, 12
    s_add_u32 s{sT}, s{sT}, {SCR}
    v_add_u32 v{vX0}, s{sT}, v{vL16}
    s_xor_b32 s{sT2}, s{sWV}, 4
    s_lshl_b32 s{sT2}, s{sT2}, 12
    s_add_u32 s{sT2}, s{sT2}, {SCR}
    v_add_u32 v{vX1}, s{sT2}, v{vL16}
    s_nop 7
    s_cmp_eq_u32 s{sKH}, 0
    s_cbranch_scc1 L_k2_send_b
    """)
    for c in range(4):
        a(f"ds_write_b128 v{vX0}, {vr(Oa+4*c,4)} offset:{c*1024}")
    a("s_nop 1")
    for r in range(16):
        a(f"v_mov_b32 v{Oa+r}, v{Ob+r}")
    a("s_branch L_k2_sent")
    a.label("L_k2_send_b")
    for c in range(4):
        a(f"ds_write_b128 v{vX0}, {vr(Ob+4*c,4)} offset:{c*1024}")
    a.label("L_k2_sent")
    a(f"""
    s_waitcnt lgkmcnt(0)
    s_barrier
    v_lshrrev_b32 v{vX0}, 1, v{vL16}
    v_add_u32 v{vX0}, {KVT}, v{vX0}
    """)
    KT = KVL
    for c in range(6):
        a(f"ds_read_b64 {vr(KT+2*c,2)}, v{vX0} offset:{c*512}")
    for c in range(4):
        a(f"ds_read_b128 {vr(Ob+4*c,4)}, v{vX1} offset:{c*1024}")
    a("s_waitcnt lgkmcnt(4)")
    a(f"s_mov_b64 exec, s[{sONE}:{sONE+1}]")
    for r in range(12):
        a(f"v_mov_b32 v{KT+r}, {ONES}")
    a("s_mov_b64 exec, -1")
    a("s_nop 1")
    Np, Nm = Sa, Sb
    a(f"v_mfma_f32_32x32x16_bf16 {vr(Np,16)}, {vr(KT,4)}, {vr(EQ,4)}, 0")
    a(f"v_mfma_f32_32x32x16_bf16 {vr(Nm,16)}, {vr(KT+6,4)}, {vr(EQ+6,4)}, 0")
    a(f"v_mfma_f32_32x32x8_bf16 {vr(Np,16)}, {vr(KT+4,2)}, {vr(EQ+4,2)}, {vr(Np,16)}")
    a(f"v_mfma_f32_32x32x8_bf16 {vr(Nm,16)}, {vr(KT+10,2)}, {vr(EQ+10,2)}, {vr(Nm,16)}")
    a("s_waitcnt lgkmcnt(0)")
    for r in range(13):
        a(f"v_add_f32 v{Oa+r}, v{Oa+r}, v{Ob+r}")
    a(f"""
    v_rcp_f32 v{vX0}, v{Oa+12}
    v_sub_f32 v{vX1}, 1.0, v{vGB}
    v_cvt_pk_bf16_f32 v{vX1}, v{vX1}, v{vX1}
    v_lshlrev_b32 v{vX1}, 16, v{vX1}
    v_mul_f32 v{vX0}, v{vX0}, v{vX1}
    """)
    for r in range(12):
        a(f"v_mul_f32 v{Oa+r}, v{Oa+r}, v{vX0}")
    for i in range(6):
        a(f"v_cvt_pk_bf16_f32 v{Oa+i}, v{Oa+2*i}, v{Oa+2*i+1}")
    a(f"""
    v_mul_u32_u24 v{vX0}, {32768-8}, v{vHH}
    v_lshl_add_u32 v{vX0}, v{vI}, 4, v{vX0}
    s_lshl_b32 s{sT}, s{sMB}, 3
    s_lshl_b32 s{sT2}, s{sQP}, 1
    s_add_u32 s{sT}, s{sT}, s{sT2}
    s_add_u32 s{sT}, s{sT}, s{sKH}
    s_lshl_b32 s{sT}, s{sT}, 9
    s_mul_i32 s{sT2}, s{sH}, {5*32768}
    s_add_u32 s{sT2}, s{sT2}, {WS_OP}
    s_add_u32 s{sT}, s{sT}, s{sT2}
    s_add_u32 s{sT}, s{sT}, {2*32768+8}
    buffer_store_dwordx2 {vr(Oa,2)}, v{vX0}, {WS}, s{sT} offen
    s_add_u32 s{sT}, s{sT}, 32768
    buffer_store_dwordx2 {vr(Oa+2,2)}, v{vX0}, {WS}, s{sT} offen
    s_add_u32 s{sT}, s{sT}, 32768
    s_mov_b64 exec, s[{sLO}:{sLO+1}]
    buffer_store_dwordx2 {vr(Oa+4,2)}, v{vX0}, {WS}, s{sT} offen
    s_mov_b64 exec, -1
    """)
    a(f"""
    v_rcp_f32 v{vX0}, v{Np+13}
    v_rcp_f32 v{vX1}, v{Nm+13}
    s_nop 0
    v_mul_f32 v{vX2}, v{Np+12}, v{vX0}
    v_fmac_f32 v{vX2}, v{Nm+12}, v{vX1}
    v_add_f32 v{vX2}, {f32bits(1e-6)}, v{vX2}
    v_rcp_f32 v{vX2}, v{vX2}
    s_nop 0
    v_mul_f32 v{vX2}, v{vX2}, v{vGA}
    v_mul_f32 v{vX0}, v{vX0}, v{vX2}
    v_mul_f32 v{vX1}, v{vX1}, v{vX2}
    """)
    for r in range(12):
        a(f"v_mul_f32 v{Np+r}, v{Np+r}, v{vX0}")
        a(f"v_fmac_f32 v{Np+r}, v{Nm+r}, v{vX1}")
    for i in range(6):
        a(f"v_cvt_pk_bf16_f32 v{Np+i}, v{Np+2*i}, v{Np+2*i+1}")
    a(f"""
    v_lshlrev_b32 v{vX0}, 4, v{vI}
    v_lshl_add_u32 v{vX0}, v{vHH}, 3, v{vX0}
    s_lshl_b32 s{sT}, s{sTOK}, 1
    s_add_u32 s{sT}, s{sT}, s{sT2}
    buffer_store_dwordx2 {vr(Np,2)}, v{vX0}, {WS}, s{sT} offen
    s_add_u32 s{sT}, s{sT}, 32768
    buffer_store_dwordx2 {vr(Np+2,2)}, v{vX0}, {WS}, s{sT} offen
    s_add_u32 s{sT}, s{sT}, 32768
    s_mov_b64 exec, s[{sLO}:{sLO+1}]
    buffer_store_dwordx2 {vr(Np+4,2)}, v{vX0}, {WS}, s{sT} offen
    """)
    a.label("L_k2_end")
    a("s_endpgm")
    return a.text(), kernel_desc(name, 256, 64), f"; @launch kernel={name} grid=(256,1,1) block=(512,1,1) lds=163840"
```

```python
from asmlib import *
from layout import *

def gen_k3(name="k3_kernel"):
    a = Asm()
    a.raw(kernel_header(name))
    S_WS, S_OUT = 8, 12
    sWV, sMT, sKH, sMB, sNB, sT, sT2, sSRC, sM0, sOB = range(16, 26)
    vL, vT, vG, vL16, vOA, vRA, vX0 = range(1, 8)
    ACC, WF, OF = 8, 28, 68
    a(f"""
    s_cmp_ge_u32 s2, 256
    s_cbranch_scc1 L_k3_end
    s_load_dwordx2 s[4:5], s[0:1], 64
    s_load_dwordx2 s[6:7], s[0:1], 80
    v_lshrrev_b32 v{vX0}, 6, v0
    v_and_b32 v{vL}, 63, v0
    s_and_b32 s{sT}, s2, 7
    v_readfirstlane_b32 s{sWV}, v{vX0}
    s_lshr_b32 s{sT2}, s2, 3
    s_lshr_b32 s{sNB}, s{sT2}, 2
    s_and_b32 s{sT2}, s{sT2}, 3
    s_lshl_b32 s{sMB}, s{sT}, 2
    s_add_u32 s{sMB}, s{sMB}, s{sT2}
    v_and_b32 v{vT}, 15, v{vL}
    v_lshrrev_b32 v{vG}, 4, v{vL}
    v_lshlrev_b32 v{vL16}, 4, v{vL}
    s_and_b32 s{sMT}, s{sWV}, 3
    s_lshr_b32 s{sKH}, s{sWV}, 2
    s_lshl_b32 s{sM0}, s{sWV}, 10
    s_mul_i32 s{sSRC}, s{sNB}, 204800
    s_add_u32 s{sSRC}, s{sSRC}, s{sM0}
    s_add_u32 s{sSRC}, s{sSRC}, {WS_WO}
    v_lshlrev_b32 v{vOA}, 4, v{vT}
    v_lshl_add_u32 v{vOA}, v{vG}, 15, v{vOA}
    s_lshl_b32 s{sT}, s{sMB}, 2
    s_add_u32 s{sT}, s{sT}, s{sMT}
    s_lshl_b32 s{sOB}, s{sT}, 8
    s_mul_i32 s{sT2}, s{sKH}, {80*32768}
    s_add_u32 s{sOB}, s{sOB}, s{sT2}
    s_add_u32 s{sOB}, s{sOB}, {WS_OP}
    s_mul_i32 s{sT2}, s{sKH}, 5120
    v_add_u32 v{vRA}, s{sT2}, v{vL16}
    s_waitcnt lgkmcnt(0)
    """)
    srd(a, S_WS, 6, WS_END)
    srd(a, S_OUT, 4, MATSZ)
    WS = f"s[{S_WS}:{S_WS+3}]"
    def dma(gq):
        for jj in range(5):
            j = 5 * gq + jj
            a(f"s_add_u32 m0, s{sM0}, {8192*(j%20)}")
            a(f"s_add_u32 s{sT}, s{sSRC}, {8192*j}")
            a(f"buffer_load_dwordx4 v{vL16}, {WS}, s{sT} offen lds")
            a.vm_issue(("w", gq))
    def oload(gq):
        for q in range(4):
            ds = 4 * gq + q
            a(f"s_add_u32 s{sT}, s{sOB}, {ds*4*32768}")
            a(f"buffer_load_dwordx4 {vr(OF+4*ds,4)}, v{vOA}, {WS}, s{sT} offen")
            a.vm_issue(("o", gq))
    for gq in range(3):
        dma(gq); oload(gq)
    def compute(gq):
        base = (gq % 4) * 40960
        lg = []
        items = [(q, nt) for q in range(4) for nt in range(5)]
        def rd(n):
            q, nt = items[n]
            off = base + q * 10240 + nt * 1024
            reg = vRA if off < 65536 else (vX0 if off < 131072 else 0)
            a(f"ds_read_b128 {vr(WF+4*(n%10),4)}, v{reg} offset:{off % 65536}")
        PF = 8
        for n in range(PF): rd(n)
        for n in range(20):
            if n + PF < 20: rd(n + PF)
            a(f"s_waitcnt lgkmcnt({min(PF, 19-n)})")
            q, nt = items[n]
            ds = 4 * gq + q
            c = "0" if ds == 0 else vr(ACC + 4 * nt, 4)
            a(f"v_mfma_f32_16x16x32_bf16 {vr(ACC+4*nt,4)}, {vr(WF+4*(n%10),4)}, {vr(OF+4*ds,4)}, {c}")
    a(f"v_add_u32 v{vX0}, 0x10000, v{vRA}")
    a(f"v_add_u32 v0, 0x20000, v{vRA}")
    a.vm_wait(("o", 0)); a("s_barrier")
    dma(3); oload(3); oload(4)
    compute(0)
    a.vm_wait(("o", 1)); a("s_barrier")
    dma(4)
    compute(1)
    a.vm_wait(("o", 2)); a("s_barrier")
    compute(2)
    a.vm_wait(("o", 3)); a("s_barrier")
    compute(3)
    a.vm_wait(("w", 4)); a("s_barrier")
    compute(4)
    a(f"""
    s_mul_i32 s{sT}, s{sMT}, 5120
    s_add_u32 s{sT}, s{sT}, 40960
    v_add_u32 v{vX0}, s{sT}, v{vL16}
    s_cmp_eq_u32 s{sKH}, 0
    s_cbranch_scc1 L_k3_lo
    s_nop 4
    """)
    for nt in range(5):
        a(f"ds_write_b128 v{vX0}, {vr(ACC+4*nt,4)} offset:{nt*1024}")
    a("""
    s_waitcnt lgkmcnt(0)
    s_barrier
    s_endpgm
    """)
    a.label("L_k3_lo")
    a(f"""
    s_lshl_b32 s{sT}, s{sMB}, 2
    s_add_u32 s{sT}, s{sT}, s{sMT}
    s_mul_i32 s{sT}, s{sT}, {16*1280}
    s_mul_i32 s{sT2}, s{sNB}, 160
    s_add_u32 s{sT}, s{sT}, s{sT2}
    v_mul_u32_u24 v{vOA}, 1280, v{vT}
    v_lshl_add_u32 v{vOA}, v{vG}, 3, v{vOA}
    s_barrier
    """)
    for nt in range(5):
        a(f"ds_read_b128 {vr(WF+4*nt,4)}, v{vX0} offset:{nt*1024}")
    for nt in range(5):
        a(f"s_waitcnt lgkmcnt({4-nt})")
        for r in range(4):
            a(f"v_add_f32 v{ACC+4*nt+r}, v{ACC+4*nt+r}, v{WF+4*nt+r}")
        a(f"v_cvt_pk_bf16_f32 v{ACC+4*nt}, v{ACC+4*nt}, v{ACC+4*nt+1}")
        a(f"v_cvt_pk_bf16_f32 v{ACC+4*nt+1}, v{ACC+4*nt+2}, v{ACC+4*nt+3}")
        a(f"buffer_store_dwordx2 {vr(ACC+4*nt,2)}, v{vOA}, s[{S_OUT}:{S_OUT+3}], s{sT} offen offset:{nt*32}")
    a.label("L_k3_end")
    a("s_endpgm")
    return a.text(), kernel_desc(name, 152, 64), f"; @launch kernel={name} grid=(256,1,1) block=(512,1,1) lds=163840"
```

```python
import sys, importlib
sys.path.insert(0, "gen")
NAME = "gated_mix__linear_kernel_hedgehog__softmax_full_mha__prompt"
def build(kernels, path):
    ref = open(f"cdna_kernels/{NAME}.s.ref").read().splitlines()
    hdr = [l for l in ref if l.startswith(";") and "@launch" not in l and "Override launch" not in l and "grid=ceil" not in l]
    out = "\n".join(hdr) + "\n"
    out += "\n".join(k[2] for k in kernels) + "\n"
    out += '.amdgcn_target "amdgcn-amd-amdhsa--gfx950"\n.text\n'
    out += "".join(k[0] for k in kernels)
    out += '.section .rodata,"a"\n'
    out += "".join(k[1] for k in kernels)
    open(path, "w").write(out)
    return out
if __name__ == "__main__":
    import k1
    ks = [k1.gen_k1()]
    try:
        import k2
        ks.append(k2.gen_k2())
        import k3
        ks.append(k3.gen_k3())
    except ImportError as e:
        print("partial build:", e)
    path = sys.argv[1] if len(sys.argv) > 1 else f"cdna_kernels/{NAME}.s"
    build(ks, path)
    print("wrote", path)
```
